```python
import torch

def _softmax(x, axis=-1):
    return torch.softmax(x, dim=axis)
def _gelu(x):
    return torch.nn.functional.gelu(x, approximate="tanh")
def _silu(x):
    return torch.nn.functional.silu(x)
def _sigmoid(x):
    return torch.sigmoid(x)
def _layernorm(x, axis=-1, eps=1e-5):
    m = x.mean(dim=axis, keepdim=True)
    v = x.var(dim=axis, keepdim=True, unbiased=False)
    return (x - m) / torch.sqrt(v + eps)
def _scatter_add(tgt, idx, src, axis=0):
    return tgt.clone().index_add_(axis, idx, src)
def _segment_sum(src, seg, n):
    out = torch.zeros((n,) + src.shape[1:], dtype=src.dtype)
    return out.index_add_(0, seg, src)
def _pad(x, pw):
    flat = tuple(v for pair in reversed(pw) for v in pair)
    return torch.nn.functional.pad(x, flat)

kernel_name = 'standalone__seq2seq_rnn_t_joint__speech'

def setup_inputs():

    _w = (lambda a: (lambda t: t.to(torch.bfloat16) if t.is_floating_point() else t)(torch.as_tensor(a)))
    B, T, D, K = 2, 4000, 512, 3
    U = 8
    sc = (1.0 / (K * D)) ** 0.5
    sd = (1.0 / D) ** 0.5
    return {
        "x": _w((lambda *s: torch.randn(*s, dtype=torch.bfloat16) * 0.2)(B, T, D) * 0.5),
        "w1": _w((lambda *s: torch.randn(*s, dtype=torch.bfloat16) * 3.2)(K, D, D) * sc),
        "w2": _w((lambda *s: torch.randn(*s, dtype=torch.bfloat16) * 3.2)(K, D, D) * sc),
        "g": _w((lambda *s: torch.randn(*s, dtype=torch.bfloat16) * 3.2)(B, U, D) * 0.5),
        "w_f": _w((lambda *s: torch.randn(*s, dtype=torch.bfloat16) * 3.2)(D, D) * sd),
        "w_g": _w((lambda *s: torch.randn(*s, dtype=torch.bfloat16) * 3.2)(D, D) * sd),
        "w_o": _w((lambda *s: torch.randn(*s, dtype=torch.bfloat16) * 3.2)(D, D) * sd),
    }

def reference(x, w1, w2, g, w_f, w_g, w_o):
    B, T, D = x.shape
    K = w1.shape[0]
    pad = K // 2
    xp = _pad(x, ((0,0),(pad,pad),(0,0)))
    h = torch.zeros_like(x)
    for i in range(K):
        h = h + torch.einsum("btc,cd->btd", xp[:, i:i+T, :], w1[i])
    h = _gelu(h)[:, ::2, :]
    T1 = h.shape[1]
    hp = _pad(h, ((0,0),(pad,pad),(0,0)))
    f = torch.zeros_like(h)
    for i in range(K):
        f = f + torch.einsum("btc,cd->btd", hp[:, i:i+T1, :], w2[i])
    f = _gelu(f)[:, ::2, :]
    fe = torch.einsum("btd,de->bte", f, w_f)
    ge = torch.einsum("bud,de->bue", g, w_g)
    j = torch.tanh(fe[:, :, None, :] + ge[:, None, :, :])
    return torch.einsum("btud,dv->btuv", j, w_o)
```

```python
import fw
def k(name, wr='sc1', ld='sc1', pat='slice8', S=192*1024, rot=0, depth=16, pf=0):
    b = []; A = b.append
    A("s_load_dwordx4 s[4:7], s[0:1], 0")
    A("v_lshrrev_b32 v1, 6, v0"); A("s_nop 0"); A("v_readfirstlane_b32 s30, v1")
    A("v_and_b32 v6, 63, v0"); A("v_lshlrev_b32 v2, 4, v6")
    A("s_waitcnt lgkmcnt(0)")
    A("s_mov_b32 s8, s4"); A("s_and_b32 s9, s5, 0xffff"); A(f"s_mov_b32 s10, {64<<20}"); A("s_mov_b32 s11, 0x20000")
    A("s_mov_b32 s12, s6"); A("s_and_b32 s13, s7, 0xffff"); A(f"s_mov_b32 s14, {1<<20}"); A("s_mov_b32 s15, 0x20000")
    A("v_mov_b32 v8, v0"); A("v_mov_b32 v9, v0"); A("v_mov_b32 v10, v0"); A("v_mov_b32 v11, v0")
    if wr != 'none':
        A("s_lshl_b32 s31, s2, 2"); A("s_add_u32 s31, s31, s30"); A("s_lshl_b32 s31, s31, 10")
        for t in range(2):
            A(f"buffer_store_dwordx4 v[8:11], v2, s[8:11], s31 offen {'' if wr=='plain' else wr}")
            A(f"s_add_u32 s31, s31, {1<<20}")
        A("s_waitcnt vmcnt(0)")
    A("s_mov_b32 s37, 150")
    A(f"L_w_{name}:"); A("s_sleep 2"); A("s_sub_u32 s37, s37, 1"); A("s_cmp_lg_u32 s37, 0"); A(f"s_cbranch_scc1 L_w_{name}")
    tot = S*8 if pat == 'slice8' else S
    if pf:
        lines = tot//128//32//4
        A("s_lshr_b32 s33, s2, 3"); A("s_lshl_b32 s33, s33, 2"); A("s_add_u32 s33, s33, s30"); A(f"s_mul_i32 s33, s33, {lines*128}")
        A("v_lshlrev_b32 v7, 7, v6")
        A("s_memtime s[26:27]")
        for i in range(0, lines, 64):
            n = min(64, lines-i)
            if n < 64: A(f"s_mov_b64 exec, {hex((1<<n)-1)}")
            A(f"buffer_load_dword v12, v7, s[8:11], s33 offen {ld}"); A("s_add_u32 s33, s33, 8192")
            A("s_mov_b64 exec, -1")
        A("s_waitcnt vmcnt(0)")
        A("s_memtime s[28:29]"); A("s_waitcnt lgkmcnt(0)"); A("s_sub_u32 s28, s28, s26")
        A("s_mov_b32 s37, 30")
        A(f"L_w2_{name}:"); A("s_sleep 2"); A("s_sub_u32 s37, s37, 1"); A("s_cmp_lg_u32 s37, 0"); A(f"s_cbranch_scc1 L_w2_{name}")
    else: A("s_mov_b32 s28, 0")
    A("s_barrier")
    per = S//4
    if pat == 'slice8':
        A("s_lshr_b32 s33, s2, 3"); A("s_and_b32 s33, s33, 7"); A(f"s_mul_i32 s31, s33, {S}")
    else: A("s_mov_b32 s31, 0")
    A(f"s_mul_i32 s34, s30, {per}"); A("s_add_u32 s31, s31, s34")
    n = per//1024
    if rot:
        m = "s_lshr_b32 s35, s2, 6" if pat == 'slice8' else "s_lshr_b32 s35, s2, 3"
        A(m); A(f"s_and_b32 s35, s35, {rot-1}"); A(f"s_mul_i32 s35, s35, {per//rot}")
    else: A("s_mov_b32 s35, 0")
    A("s_memtime s[22:23]"); A("s_waitcnt lgkmcnt(0)")
    for i in range(n):
        A("s_add_u32 s36, s31, s35")
        A(f"buffer_load_dwordx4 a[{4*(i%32)}:{4*(i%32)+3}], v2, s[8:11], s36 offen {ld}")
        A("s_add_u32 s35, s35, 1024"); A(f"s_cmp_eq_u32 s35, {per}"); A("s_cselect_b32 s35, 0, s35")
    A("s_waitcnt vmcnt(0)")
    A("s_memtime s[24:25]"); A("s_waitcnt lgkmcnt(0)"); A("s_sub_u32 s24, s24, s22")
    A("v_mov_b32 v21, s24"); A("v_mov_b32 v22, s28")
    A("s_lshl_b32 s38, s2, 2"); A("s_add_u32 s38, s38, s30"); A("s_lshl_b32 s38, s38, 3"); A("v_mov_b32 v3, s38")
    A(f"buffer_store_dword v21, v3, s[12:15], 0 offen"); A(f"buffer_store_dword v22, v3, s[12:15], 0 offen offset:4")
    A("s_endpgm")
    return "\n".join(x for x in b if x)
cfgs = []
def add(name, **kw):
    cfgs.append(dict(name=name, body=k(name, **kw), vgpr=192, accum=64, sgpr=80, wg=256, kw=kw))
for wr in ('none', 'sc1', 'plain', 'sc0 sc1', 'nt sc1'):
    for ld in ('sc1', ''):
        add(f"s8_{wr.replace(' ','')}_{ld or 'pl'}", wr=wr, ld=ld)
add("s8_rot4", rot=4)
add("s8_pf", pf=1)
add("all_sc1", pat='all', S=192*1024)
add("all_rot4", pat='all', S=192*1024, rot=4)
add("all_rot16", pat='all', S=192*1024, rot=16)
add("all_pf", pat='all', S=192*1024, pf=1)
if __name__ == "__main__":
    import json
    json.dump([dict(name=c['name'], wg=c['wg'], kw=c['kw']) for c in cfgs], open("e16.json", "w"))
    fw.build("e16", cfgs, nptr=2)
```
